```python
import torch

def _softmax(x, axis=-1):
    return torch.softmax(x, dim=axis)

def _gelu(x):
    return torch.nn.functional.gelu(x, approximate='tanh')

def _silu(x):
    return torch.nn.functional.silu(x)

def _sigmoid(x):
    return torch.sigmoid(x)

def _layernorm(x, axis=-1, eps=1e-05):
    m = x.mean(dim=axis, keepdim=True)
    v = x.var(dim=axis, keepdim=True, unbiased=False)
    return (x - m) / torch.sqrt(v + eps)

def _scatter_add(tgt, idx, src, axis=0):
    return tgt.clone().index_add_(axis, idx, src)

def _segment_sum(src, seg, n):
    out = torch.zeros((n,) + src.shape[1:], dtype=src.dtype)
    return out.index_add_(0, seg, src)

def _pad(x, pw):
    flat = tuple((v for pair in reversed(pw) for v in pair))
    return torch.nn.functional.pad(x, flat)
kernel_name = 'adaLN_cond__spectral_gfnet__glu_gated_bilinear__prompt'

def setup_inputs():

    _w = lambda a: (lambda t: t.to(torch.bfloat16) if t.is_floating_point() else t)(torch.as_tensor(a))

    def _A_setup():
        B, S, D = (1, 2048, 640)
        Df = D // 2 + 1
        return {'x': _w((lambda *s: torch.randn(*s, dtype=torch.bfloat16) * 0.05)(B, S, D)), 'w_r': _w((lambda *s: torch.randn(*s, dtype=torch.bfloat16) * 1.6)(S, Df) * 0.02), 'w_i': _w((lambda *s: torch.randn(*s, dtype=torch.bfloat16) * 1.6)(S, Df) * 0.02)}
    _A_in = _A_setup()

    def _B_setup():
        B, S, D, F = (1, 2048, 640, 1728)
        return {'x': _w((lambda *s: torch.randn(*s, dtype=torch.bfloat16) * 0.05)(B, S, D)), 'w_gate': _w((lambda *s: torch.randn(*s, dtype=torch.bfloat16) * 0.4)(D, F) * D ** (-0.5)), 'w_up': _w((lambda *s: torch.randn(*s, dtype=torch.bfloat16) * 0.4)(D, F) * D ** (-0.5)), 'w_down': _w((lambda *s: torch.randn(*s, dtype=torch.bfloat16) * 0.4)(F, D) * F ** (-0.5))}
    _B_in = _B_setup()
    return {'A_x': _A_in['x'], 'A_w_r': _A_in['w_r'], 'A_w_i': _A_in['w_i'], 'B_x': _B_in['x'], 'B_w_gate': _B_in['w_gate'], 'B_w_up': _B_in['w_up'], 'B_w_down': _B_in['w_down'], 'c': _w((lambda *s: torch.randn(*s, dtype=torch.bfloat16) * 0.1)(1, 640) * 8.0), 'w_mod': _w((lambda *s: torch.randn(*s, dtype=torch.bfloat16) * 0.1)(640, 6 * 640) * 640 ** (-0.5) * 8.0)}

def reference(A_x, A_w_r, A_w_i, B_x, B_w_gate, B_w_up, B_w_down, c, w_mod):

    def _A_ref(x, w_r, w_i):
        B, S, D = x.shape
        X = (lambda x, axes=(-2, -1): torch.fft.rfft2(x.float(), dim=axes))(x, axes=(-2, -1))
        W = w_r + 1j * w_i
        X = X * W
        y = (lambda x, s, axes=(-2, -1): torch.fft.irfft2(x, s=s, dim=axes).to(torch.bfloat16))(X, (S, D), axes=(-2, -1))
        return y

    def _B_ref(x, w_gate, w_up, w_down):
        g = torch.einsum('bsd,df->bsf', x, w_gate)
        u = torch.einsum('bsd,df->bsf', x, w_up)
        h = g * u
        return torch.einsum('bsf,fd->bsd', h, w_down)
    x = A_x
    mod = (_silu(c) @ w_mod).reshape(c.shape[0], 6, 1, -1)
    sa, ca, ga, sb, cb, gb = (mod[:, 0].clone(), mod[:, 1].clone(), mod[:, 2].clone(), mod[:, 3].clone(), mod[:, 4].clone(), mod[:, 5].clone())
    h = _layernorm(x, axis=-1) * (1 + ca) + sa
    x = x + ga * _A_ref(h, A_w_r, A_w_i)
    h = _layernorm(x, axis=-1) * (1 + cb) + sb
    x = x + gb * _B_ref(h, B_w_gate, B_w_up, B_w_down)
    return x
```

```python
import re, struct

def f2u(x):
    return struct.unpack('<I', struct.pack('<f', x))[0]
def hexf(x):
    return '0x%08x' % f2u(x)

_REG = re.compile(r'^(-|abs\()?([vas])(?:(\d+)|\[(\d+):(\d+)\])\)?$')
TRANS = ('v_exp_f32', 'v_log_f32', 'v_rcp_f32', 'v_rsq_f32', 'v_sqrt_f32', 'v_sin_f32', 'v_cos_f32')

def regs_of(tok):
    tok = tok.strip()
    if tok == 'vcc': return {('s', 106), ('s', 107)}
    if tok == 'exec': return {('s', 126), ('s', 127)}
    if tok == 'm0': return {('s', 124)}
    m = _REG.match(tok)
    if not m: return set()
    k = m.group(2)
    if m.group(3) is not None: return {(k, int(m.group(3)))}
    return {(k, i) for i in range(int(m.group(4)), int(m.group(5)) + 1)}

def split_ops(s):
    out, depth, cur = [], 0, ''
    for ch in s:
        if ch in '[(': depth += 1
        if ch in '])': depth -= 1
        if ch == ',' and depth == 0:
            out.append(cur.strip()); cur = ''
        else: cur += ch
    if cur.strip(): out.append(cur.strip())
    return out

class Ins:
    def __init__(self, text):
        self.text = text
        t = text.split(';')[0].strip()
        parts = t.split(None, 1)
        self.mn = mn = parts[0]
        ops = split_ops(parts[1]) if len(parts) > 1 else []
        mods = ''
        if ops:
            sp = ops[-1].split(None, 1)
            if len(sp) > 1 and not ops[-1].startswith('hwreg') and not mn.startswith('s_waitcnt'):
                ops[-1] = sp[0]; mods = sp[1]
        self.ops, self.mods = ops, mods
        R = [regs_of(o) for o in ops]
        self.rd, self.wr = set(), set()
        self.kind = 'other'; self.passes = 0; self.srcc = set(); self.ab = set(); self.sdata = set()
        self.dpp = '_dpp' in mn or 'row_' in mods or 'quad_perm' in mods
        if mn.startswith('v_mfma'):
            self.kind = 'mfma'
            self.passes = 8 if '32x32x16' in mn else 4 if '16x16x32' in mn else None
            assert self.passes, mn
            self.wr = R[0]; self.ab = R[1] | R[2]; self.srcc = R[3]; self.rd = self.ab | self.srcc
        elif mn.startswith('v_'):
            self.kind = 'valu'
            self.trans = mn.replace('_e32', '').replace('_e64', '') in TRANS
            self.wr = set(R[0]); self.rd = set().union(*R[1:]) if len(R) > 1 else set()
            if mn.startswith(('v_fmac', 'v_dot2c', 'v_writelane')): self.rd |= R[0]
            if mn.startswith('v_permlane'):
                self.wr = R[0] | R[1]; self.rd = R[0] | R[1]
            if mn.startswith(('v_add_co', 'v_sub_co', 'v_addc_co')): raise Exception('unsupported ' + mn)
            if self.dpp: self.rd |= R[0]
        elif mn.startswith(('buffer_', 'global_')):
            self.kind = 'vmem'
            lds = re.search(r'\blds\b', mods) is not None
            self.lds = lds
            if mn.startswith(('buffer_wbl2', 'buffer_inv')): pass
            elif 'load' in mn and not lds:
                self.wr = set(R[0]); self.rd = set().union(*R[1:])
                if 'd16' in mn: self.rd |= R[0]
            else:
                self.rd = set().union(*R)
                if lds: self.rd |= {('s', 124)}
                if 'store' in mn and ('x4' in mn or 'x3' in mn):
                    self.sdata = R[0] if mn.startswith('buffer_') else R[1]
                if 'atomic' in mn and 'sc0' in mods:
                    self.wr = set(R[0])
        elif mn.startswith('ds_'):
            self.kind = 'ds'
            if mn.startswith(('ds_read', 'ds_bpermute', 'ds_permute', 'ds_swizzle')):
                self.wr = set(R[0]); self.rd = set().union(*R[1:])
                if 'd16' in mn: self.rd |= R[0]
            else: self.rd = set().union(*R)
        elif mn.startswith('s_'):
            self.kind = 'salu'
            if mn.startswith(('s_cmp', 's_cbranch', 's_branch', 's_waitcnt', 's_barrier', 's_nop', 's_endpgm', 's_sleep', 's_setprio', 's_bitcmp')):
                self.rd = set().union(*R) if R else set()
            else:
                self.wr = set(R[0]) if R else set(); self.rd = set().union(*R[1:]) if len(R) > 1 else set()
                if 'saveexec' in mn: self.wr |= {('s', 126), ('s', 127)}
        self.states = int(ops[0], 0) + 1 if mn == 's_nop' else 1

def need(p, c):
    n = 0
    isv = lambda S: {r for r in S if r[0] in 'va'}
    iss = lambda S: {r for r in S if r[0] == 's'}
    if p.kind == 'valu':
        vw = isv(p.wr); sw = iss(p.wr)
        dl = p.mn.startswith('v_dot')
        if c.kind == 'mfma' and vw & c.rd: n = max(n, 3 if dl else 2)
        if c.kind == 'valu':
            if p.trans and not c.trans and vw & c.rd: n = max(n, 1)
            if p.trans and c.trans and vw & c.rd: n = max(n, 1)
            if c.dpp and vw & c.rd: n = max(n, 2)
            if c.mn.startswith('v_permlane') and vw & c.rd: n = max(n, 2)
            if c.mn.startswith(('v_readlane', 'v_readfirstlane')) and vw & c.rd: n = max(n, 1)
            if sw & c.rd: n = max(n, 4 if c.mn.startswith(('v_readlane', 'v_writelane')) else 2)
            if 'op_sel' in p.mods and vw & (c.rd | c.wr): n = max(n, 1)
            if dl and vw & (c.rd | c.wr):
                same = c.mn == p.mn
                srcc_only = same and not (vw & (regs_of(c.ops[1]) | regs_of(c.ops[2])))
                if not srcc_only: n = max(n, 3)
        if dl and c.kind in ('vmem', 'ds') and vw & c.rd: n = max(n, 3)
        if c.kind == 'vmem' and sw & c.rd: n = max(n, 5)
        if c.kind == 'salu' and sw & c.rd: n = max(n, 1)
    elif p.kind == 'mfma':
        big = {4: 8, 8: 12}[p.passes]
        if c.kind == 'mfma':
            if p.wr & c.ab: n = max(n, big)
            if p.wr & c.srcc and not (p.wr == c.srcc and p.passes == c.passes): n = max(n, {4: 6, 8: 10}[p.passes])
            if p.wr & c.wr and not (p.wr == c.srcc): n = max(n, {4: 6, 8: 10}[p.passes])
        elif c.kind in ('valu', 'vmem', 'ds'):
            if p.wr & (c.rd | c.wr): n = max(n, big)
            if c.kind == 'valu' and p.srcc & c.wr: n = max(n, {4: 3, 8: 7}[p.passes])
    elif p.kind == 'salu':
        if ('s', 124) in p.wr and c.kind == 'vmem' and getattr(c, 'lds', False): n = max(n, 1)
    elif p.kind == 'vmem':
        if p.sdata & c.wr: n = max(n, 2 if c.kind == 'valu' else 1)
    return n

class Asm:
    def __init__(self):
        self.out = []
        self.hist = []
        self.nins = 0
        self.maxv = -1; self.maxa = -1; self.maxs = -1
    def raw(self, t): self.out.append(t)
    def cm(self, t): self.out.append('    ; ' + t)
    def label(self, l):
        self.out.append(l + ':')
    def _emit(self, i):
        self.out.append('    ' + i.text); self.hist.append(i); self.nins += 1
        if len(self.hist) > 24: self.hist.pop(0)
        for k, r in i.rd | i.wr:
            if k == 'v': self.maxv = max(self.maxv, r)
            elif k == 'a': self.maxa = max(self.maxa, r)
            elif r < 102: self.maxs = max(self.maxs, r)
    def __call__(self, text):
        for t in text.strip().split('\n'):
            t = t.strip()
            if not t: continue
            if t.startswith(';'): self.cm(t[1:].strip()); continue
            c = Ins(t)
            dist = 0; pad = 0
            for p in reversed(self.hist):
                pad = max(pad, need(p, c) - dist)
                dist += p.states
                if dist >= 12: break
            if pad > 0: self._emit(Ins('s_nop %d' % (pad - 1)))
            self._emit(c)
    def settle(self):
        dist = 0; pad = 0
        for p in reversed(self.hist):
            w = {4: 8, 8: 12}[p.passes] if p.kind == 'mfma' else 5 if p.kind == 'valu' else 2 if p.kind == 'vmem' else 1
            pad = max(pad, w - dist); dist += p.states
            if dist >= 12: break
        if pad > 0: self._emit(Ins('s_nop %d' % (pad - 1)))
    def newkernel(self):
        self.hist = []; self.maxv = -1; self.maxa = -1; self.maxs = -1
    def text(self): return '\n'.join(self.out) + '\n'

def vr(b, n=1): return 'v%d' % b if n == 1 else 'v[%d:%d]' % (b, b + n - 1)
def ar(b, n=1): return 'a%d' % b if n == 1 else 'a[%d:%d]' % (b, b + n - 1)
def sr(b, n=1): return 's%d' % b if n == 1 else 's[%d:%d]' % (b, b + n - 1)
```

```python
import sys
from asmlib import *

NAME = 'adaLN_cond__spectral_gfnet__glu_gated_bilinear__prompt'
T_OFF = 0x000000
FP_OFF = 0x280000
G_OFF = 0x360000
Z_OFF = 0x440000
WGU_OFF = 0x6E0000
WD_OFF = 0xB20000
XS_OFF = 0xD40000
HH_OFF = 0xFC0000
X1_OFF = 0x1680000
MODF_OFF = 0x1980000
MODB_OFF = 0x1984000
GP_OFF = 0x1988000
V12_OFF = 0x1998000
ST_OFF = 0x19D0000
FLG_OFF = 0x19F0000
WS_USED = 0x1A00000
PITCH = 1312
KA = dict(x=0, wr=8, wi=16, wg=32, wu=40, wd=48, c=56, wmod=64, out=72, dbg=80, ws=88)
SZ = dict(x=2621440, wr=2048*642, wi=2048*642, wg=640*3456, wu=640*3456, wd=1728*1280, c=1280, wmod=640*7680, out=2621440, ws=WS_USED, dbg=256)

a = Asm()

def srd_load(names, base):
    d = {}
    for i, n in enumerate(names):
        b = base + 4 * i
        a(f's_load_dwordx2 s[{b}:{b+1}], s[0:1], {KA[n]}')
        d[n] = sr(b, 4)
    for i, n in enumerate(names):
        b = base + 4 * i
        a(f's_mov_b32 s{b+2}, {SZ[n]}')
        a(f's_mov_b32 s{b+3}, 0x20000')
    return d

def lane_wave(vl, sw):
    a(f'v_lshrrev_b32 v{vl}, 6, v0')
    a(f'v_readfirstlane_b32 s{sw}, v{vl}')
    a(f'v_and_b32 v{vl}, 63, v0')

def kernel_begin(name):
    a.raw(f'.globl {name}\n.p2align 8\n.type {name},@function\n{name}:')
    a.newkernel()

KD = []
def kernel_end(name):
    nv = a.maxv + 1
    acc = (nv + 3) // 4 * 4
    tot = acc + a.maxa + 1 if a.maxa >= 0 else nv
    KD.append(f'''.amdhsa_kernel {name}
  .amdhsa_next_free_vgpr {tot}
  .amdhsa_next_free_sgpr {max(a.maxs + 1, 16)}
  .amdhsa_accum_offset {acc}
  .amdhsa_group_segment_fixed_size 0
  .amdhsa_kernarg_size 96
  .amdhsa_user_sgpr_count 2
  .amdhsa_user_sgpr_kernarg_segment_ptr 1
  .amdhsa_system_sgpr_workgroup_id_x 1
.end_amdhsa_kernel''')
    print(f'; {name}: vgpr {nv} agpr {a.maxa+1} sgpr {a.maxs+1}', file=sys.stderr)

def rows_to_lds(srd, vl, sw, s_goff, stride, vt):
    a(f'v_mul_u32_u24 v{vt}, 6394, v{vl}')
    a(f'v_lshlrev_b32 v{vt+1}, 4, v{vl}')
    a(f's_mul_i32 s40, s{sw}, {16*PITCH}')
    a(f's_mov_b32 s41, {stride - PITCH}')
    a('s_mov_b32 m0, s40')
    for n in range(21):
        t = vt + 2 + (n & 1)
        a(f'v_add_u32 v{t}, {64*n*6394}, v{vt}')
        a(f'v_lshrrev_b32 v{t}, 19, v{t}')
        a(f'v_mad_i32_i24 v{t}, v{t}, s41, v{vt+1}')
        if n == 20: a('s_mov_b32 exec_hi, 0')
        a(f'buffer_load_dwordx4 v{t}, {srd}, s{s_goff} offen lds')
        if n < 20: a(f's_add_u32 m0, m0, 1024\nv_add_u32 v{vt+1}, 1024, v{vt+1}')
    a('s_mov_b64 exec, -1')

def gemv(nc, S, vl, sw, s_col, after_issue=None):
    lpr = nc // 8; gpw = 64 // lpr; rpg = 640 // (4 * gpw)
    sh = {4: 2, 8: 3}[lpr]
    VC = 12
    VH = VC + 12; VLo = VH + rpg; VW = (VLo + rpg + 3) // 4 * 4; VA = VW + 4 * rpg
    a(f'v_lshrrev_b32 v4, {sh}, v0')
    a(f'v_mul_u32_u24 v5, {rpg*2}, v4')
    a(f'buffer_load_dwordx4 v[{VC}:{VC+3}], v5, {S["c"]}, 0 offen')
    if rpg == 10: a(f'buffer_load_dword v{VC+4}, v5, {S["c"]}, 0 offen offset:16')
    else:
        a(f'buffer_load_dwordx4 v[{VC+4}:{VC+7}], v5, {S["c"]}, 0 offen offset:16')
        a(f'buffer_load_dwordx2 v[{VC+8}:{VC+9}], v5, {S["c"]}, 0 offen offset:32')
    ncl = 2 if rpg == 10 else 3
    a(f's_mov_b32 s42, {rpg*7680}')
    a(f'v_mul_lo_u32 v6, v4, s42')
    a(f'v_and_b32 v7, {lpr-1}, v0')
    a(f'v_lshl_add_u32 v6, v7, 4, v6')
    a(f's_lshl_b32 s42, s{s_col}, 1')
    for n in range(rpg):
        if n: a('s_add_u32 s42, s42, 7680')
        a(f'buffer_load_dwordx4 v[{VW+4*n}:{VW+4*n+3}], v6, {S["wmod"]}, s42 offen')
    a(f's_waitcnt vmcnt({rpg})')
    for n in range(rpg):
        h = VH + n
        if n & 1: a(f'v_and_b32 v{h}, 0xffff0000, v{VC+n//2}')
        else: a(f'v_lshlrev_b32 v{h}, 16, v{VC+n//2}')
        a(f'v_mul_f32 v{VLo+n}, {hexf(-1.4426950408889634)}, v{h}')
        a(f'v_exp_f32 v{VLo+n}, v{VLo+n}')
    for n in range(rpg):
        a(f'v_add_f32 v{VLo+n}, 1.0, v{VLo+n}')
        a(f'v_rcp_f32 v{VLo+n}, v{VLo+n}')
    for n in range(rpg):
        a(f'v_mul_f32 v{VH+n}, v{VH+n}, v{VLo+n}')
        a(f'v_cvt_pk_bf16_f32 v{VLo+n}, v{VH+n}, 0')
        a(f'v_lshlrev_b32 v{VH+n}, 16, v{VLo+n}')
    for e in range(8): a(f'v_mov_b32 v{VA+e}, 0')
    nextv = VA + 8
    if after_issue: after_issue(nextv)
    for n in range(rpg):
        a(f's_waitcnt vmcnt({rpg-1-n})')
        for e in range(8):
            a(f'v_dot2_f32_bf16 v{VA+e}, v{VW+4*n+e//2}, v{(VH if e & 1 else VLo)+n}, v{VA+e}')
    for st in ([4, 8] if lpr == 4 else [8]):
        for e in range(8):
            a(f'v_add_f32_dpp v{VA+e}, v{VA+e}, v{VA+e} row_ror:{st} row_mask:0xf bank_mask:0xf')
    a(f'v_lshrrev_b32 v4, 4, v0')
    a(f'v_mul_u32_u24 v4, {nc*4}, v4')
    a(f'v_and_b32 v5, 15, v0')
    a(f'v_lshl_add_u32 v4, v5, 5, v4')
    m = (1 << lpr) - 1
    m32 = m | m << 16
    a(f's_mov_b32 exec_lo, {m32:#x}\ns_mov_b32 exec_hi, {m32:#x}')
    a(f'ds_write_b128 v4, v[{VA}:{VA+3}]')
    a(f'ds_write_b128 v4, v[{VA+4}:{VA+7}] offset:16')
    a('s_mov_b64 exec, -1')
    a('s_waitcnt lgkmcnt(0)\ns_barrier')
    if nc == 32:
        a(f'v_and_b32 v4, 31, v{vl}\nv_lshlrev_b32 v4, 2, v4')
        a(f'v_lshrrev_b32 v5, 5, v{vl}\nv_lshl_add_u32 v4, v5, 10, v4')
        np_ = 8
    else:
        a(f'v_lshlrev_b32 v4, 2, v{vl}')
        np_ = 16
    for i in range(np_): a(f'ds_read_b32 v{VW+i}, v4 offset:{i*nc*4}')
    a('s_waitcnt lgkmcnt(0)')
    st = 1
    while st < np_:
        for i in range(0, np_, 2*st): a(f'v_add_f32 v{VW+i}, v{VW+i}, v{VW+i+st}')
        st *= 2
    if nc == 32:
        a(f'v_mov_b32 v{VW+1}, v{VW}')
        a(f'v_permlane32_swap_b32 v{VW}, v{VW+1}')
        a(f'v_add_f32 v{VW}, v{VW}, v{VW+1}')
    a(f'v_cvt_pk_bf16_f32 v10, v{VW}, v{VW}')
    a(f'v_lshlrev_b32 v10, 16, v10')
    return nextv

def mod_store(nc, S, vl, sw, s_col, plus1_cond):
    if plus1_cond is True: a('v_add_f32 v10, 1.0, v10')
    elif plus1_cond is not False: a(f'v_add_f32 v10, s{plus1_cond}, v10')
    if plus1_cond is not False:
        a('v_cvt_pk_bf16_f32 v10, v10, v10\nv_lshlrev_b32 v10, 16, v10')
    lab = f'L_ms_{len(a.out)}'
    a(f's_cmp_lg_u32 s{sw}, 0')
    a(f's_cbranch_scc1 {lab}')
    if nc == 32: a('s_mov_b32 exec_hi, 0')
    a(f'v_lshlrev_b32 v4, 2, v{vl}\nv_lshlrev_b32 v5, 1, v{vl}')
    a(f's_lshl_b32 s42, s{s_col}, 2\ns_add_u32 s42, s42, {MODF_OFF}')
    a(f's_lshl_b32 s43, s{s_col}, 1\ns_add_u32 s43, s43, {MODB_OFF}')
    a(f'buffer_store_dword v10, v4, {S["ws"]}, s42 offen')
    a(f'buffer_store_short_d16_hi v10, v5, {S["ws"]}, s43 offen')
    a('s_mov_b64 exec, -1')
    a.settle(); a.label(lab)

def k1():
    name = 'k1_kernel'
    kernel_begin(name)
    S = srd_load(['x', 'ws', 'c', 'wmod', 'wd'], 8)
    VL = 1; SW = 3
    lane_wave(VL, SW)
    a('s_cmp_ge_u32 s2, 160')
    a('s_cbranch_scc1 L_k1_other')
    a('s_and_b32 s4, s2, 7\ns_lshr_b32 s5, s2, 3\ns_mul_i32 s6, s5, 52\ns_lshr_b32 s6, s6, 8')
    a('s_mul_i32 s7, s6, 5\ns_sub_u32 s5, s5, s7')
    a('s_lshl_b32 s4, s4, 2\ns_add_u32 s4, s4, s6')
    a(f's_lshl_b32 s44, s{SW}, 9\ns_add_u32 s44, s44, s4\ns_mul_i32 s44, s44, 1280')
    a('s_waitcnt lgkmcnt(0)')
    rows_to_lds(S['x'], VL, SW, 44, 40960, 4)
    a(f'v_and_b32 v2, 15, v{VL}\nv_lshrrev_b32 v3, 4, v{VL}')
    VE = 16
    a(f's_lshl_b32 s6, s{SW}, 4')
    a('v_add_u32 v4, s6, v2')
    a('v_lshrrev_b32 v5, 1, v4\nv_and_b32 v6, 1, v4')
    a('v_cmp_eq_u32 vcc, 1, v4')
    a('v_cndmask_b32 v5, v5, 32, vcc\nv_cndmask_b32 v6, v6, 0, vcc')
    a('v_cvt_f32_u32 v5, v5\nv_cvt_f32_u32 v6, v6\nv_cvt_f32_u32 v7, v3')
    a(f'v_mul_f32 v5, {hexf(1/64)}, v5\nv_mul_f32 v6, {hexf(0.25)}, v6\nv_mul_f32 v7, {hexf(8.0)}, v7')
    a('v_fma_f32 v6, v5, v7, v6')
    for kk in range(2):
        for jj in range(8):
            r = VE + 8*kk + jj
            a(f'v_fmamk_f32 v{r}, v5, {hexf(32*kk+jj)}, v6')
            a(f'v_cos_f32 v{r}, v{r}')
    def gfrag(sid):
        a(f's_mul_i32 s46, s{sid}, 3121\ns_lshr_b32 s46, s46, 16')
        a(f's_mul_i32 s47, s46, 21\ns_sub_u32 s47, s{sid}, s47')
        a('s_mul_i32 s48, s46, 52\ns_lshr_b32 s48, s48, 8')
        a('s_mul_i32 s49, s48, 60\ns_lshl_b32 s50, s46, 2\ns_add_u32 s49, s49, s50')
        a('v_lshrrev_b32 v8, 2, v2\nv_mul_u32_u24 v8, 20, v8\nv_and_b32 v9, 3, v2\nv_add3_u32 v8, v8, v9, s49')
        a('s_lshl_b32 s50, s47, 4\nv_lshl_add_u32 v9, v3, 2, s50')
        a('v_mul_u32_u24 v10, v8, v9')
        a('v_lshrrev_b32 v11, 7, v10\nv_mul_u32_u24 v11, 52429, v11\nv_lshrrev_b32 v11, 18, v11')
        a('v_mul_u32_u24 v11, 640, v11\nv_sub_u32 v10, v10, v11')
        a('v_cvt_f32_u32 v10, v10\nv_cvt_f32_u32 v8, v8')
        a(f'v_mul_f32 v10, {hexf(1/640)}, v10\nv_mul_f32 v8, {hexf(1/640)}, v8')
        for jj in range(4):
            a(f'v_fmamk_f32 v{32+jj}, v8, {hexf(jj)}, v10')
            a(f'v_sin_f32 v{36+jj}, v{32+jj}\nv_cos_f32 v{32+jj}, v{32+jj}')
        a('v_mov_b32 v11, 1.0\nv_mov_b32 v12, 1.0')
        a('v_cmp_eq_u32 vcc, 0, v9\nv_cndmask_b32 v11, v11, 0.5, vcc')
        a('v_cmp_eq_u32 vcc, 320, v9\nv_cndmask_b32 v11, v11, 0.5, vcc')
        a('v_cmp_lt_u32 vcc, 320, v9\nv_cndmask_b32 v11, v11, 0, vcc')
        a('v_cmp_le_u32 vcc, 320, v9\nv_cndmask_b32 v12, v12, 0, vcc')
        a('v_mul_f32 v32, v32, v11')
        for r in (33, 34, 35, 36, 37, 38, 39): a(f'v_mul_f32 v{r}, v{r}, v12')
        for i in range(4): a(f'v_cvt_pk_bf16_f32 v{40+i}, v{32+2*i}, v{33+2*i}')
        a(f's_lshl_b32 s50, s{sid}, 10\ns_add_u32 s50, s50, {G_OFF}')
        a(f'v_lshlrev_b32 v8, 4, v{VL}')
        a(f'buffer_store_dwordx4 v[40:43], v8, {S["ws"]}, s50 offen')
    a(f's_lshl_b32 s45, s2, 2\ns_add_u32 s45, s45, s{SW}')
    gfrag(45)
    a(f's_mul_i32 s45, s{SW}, 160\ns_add_u32 s45, s45, s2\ns_add_u32 s45, s45, 640')
    a('s_cmp_ge_u32 s45, 840')
    a.settle()
    a('s_cbranch_scc1 L_k1_nog')
    gfrag(45)
    a.settle(); a.label('L_k1_nog')
    for i in range(4): a(f'v_mov_b32 v{32+i}, 0x3f803f80')
    a(f's_mul_i32 s6, s{SW}, {16*PITCH}')
    a(f'v_mul_u32_u24 v4, {PITCH}, v2\nv_lshl_add_u32 v4, v3, 4, v4\nv_add_u32 v4, s6, v4')
    a(f's_lshl_b32 s6, s5, 8')
    a(f'v_mul_u32_u24 v5, {8*PITCH}, v3\nv_lshl_add_u32 v5, v2, 4, v5\nv_add_u32 v5, s6, v5')
    a('s_waitcnt vmcnt(0)\ns_barrier')
    VS = 48
    for kk in range(20): a(f'ds_read_b128 v[{VS+4*kk}:{VS+4*kk+3}], v4 offset:{64*kk}')
    VB = 128
    nrd = 0
    for kk in range(20):
        a(f's_waitcnt lgkmcnt({min(15, 19-kk+nrd)})')
        f = vr(VS+4*kk, 4)
        a(f'v_mfma_f32_16x16x32_bf16 v[36:39], {f}, v[32:35], {"0" if kk == 0 else "v[36:39]"}')
        a(f'v_mfma_f32_16x16x32_bf16 v[40:43], {f}, {f}, {"0" if kk == 0 else "v[40:43]"}')
        if kk >= 4:
            i = kk - 4
            a(f'ds_read_b128 v[{VB+4*i}:{VB+4*i+3}], v5 offset:{((i >> 3)*32 + (i & 7))*PITCH}')
            nrd += 1
    a('s_mov_b32 s46, 0x22222222\ns_mov_b32 s47, 0x22222222\ns_mov_b32 s48, 0x44444444\ns_mov_b32 s49, 0x44444444\ns_mov_b32 s50, 0x88888888\ns_mov_b32 s51, 0x88888888')
    for b in (36, 40):
        a(f'v_cndmask_b32 v{b}, v{b}, v{b+1}, s[46:47]\nv_cndmask_b32 v{b}, v{b}, v{b+2}, s[48:49]\nv_cndmask_b32 v{b}, v{b}, v{b+3}, s[50:51]')
    a(f'v_mul_f32 v36, {hexf(-1/640)}, v36')
    a(f'v_mul_f32 v40, {hexf(1/640)}, v40')
    a('v_fma_f32 v40, -v36, v36, v40\nv_max_f32 v40, 0, v40')
    a(f'v_add_f32 v40, {hexf(1e-5)}, v40\nv_rsq_f32 v40, v40')
    a('v_cvt_pk_bf16_f32 v37, v36, v36\nv_lshlrev_b32 v38, 16, v37\nv_sub_f32 v38, v36, v38\nv_cvt_pk_bf16_f32 v38, v38, v38')
    SB = 64 * PITCH
    a(f's_lshl_b32 s6, s{SW}, 4\nv_add_u32 v6, s6, v2\nv_lshlrev_b32 v7, 1, v6\nv_lshlrev_b32 v6, 2, v6')
    a(f'v_add_u32 v6, {SB}, v6\nv_add_u32 v7, {SB}, v7')
    a('s_mov_b32 exec_lo, 0x00f0000f\ns_mov_b32 exec_hi, 0xf0000f00')
    a('ds_write_b32 v6, v40\nds_write_b16 v7, v37 offset:256\nds_write_b16 v7, v38 offset:384')
    a('s_mov_b64 exec, -1')
    a('s_waitcnt lgkmcnt(0)\ns_barrier')
    a(f'v_lshlrev_b32 v6, 5, v3\nv_add_u32 v6, {SB}, v6\nv_lshlrev_b32 v7, 4, v3\nv_add_u32 v7, {SB}, v7')
    for kk in range(2):
        a(f'ds_read_b128 v[{48+8*kk}:{51+8*kk}], v6 offset:{128*kk}\nds_read_b128 v[{52+8*kk}:{55+8*kk}], v6 offset:{128*kk+16}')
    for kk in range(2):
        a(f'ds_read_b128 v[{64+4*kk}:{67+4*kk}], v7 offset:{256+64*kk}\nds_read_b128 v[{72+4*kk}:{75+4*kk}], v7 offset:{384+64*kk}')
    a('s_mov_b32 s46, 0x05040100\ns_mov_b32 s47, 0x07060302')
    VT = 192
    for e in range(8):
        for kk in range(2):
            for i in range(4):
                lo = VB + 4*(8*kk + 2*i) + e//2; hi = lo + 4
                a(f'v_perm_b32 v{VT+8*e+4*kk+i}, v{hi}, v{lo}, s{47 if e & 1 else 46}')
    a('s_waitcnt lgkmcnt(0)')
    for i in range(16): a(f'v_mul_f32 v{VE+i}, v{VE+i}, v{48+i}')
    for i in range(8): a(f'v_cvt_pk_bf16_f32 v{80+i}, v{VE+2*i}, v{VE+2*i+1}')
    a('v_mfma_f32_16x16x32_bf16 v[88:91], v[80:83], v[64:67], 0')
    a('v_mfma_f32_16x16x32_bf16 v[88:91], v[84:87], v[68:71], v[88:91]')
    a('v_mfma_f32_16x16x32_bf16 v[88:91], v[80:83], v[72:75], v[88:91]')
    a('v_mfma_f32_16x16x32_bf16 v[88:91], v[84:87], v[76:79], v[88:91]')
    VD = 96
    for e in range(8): a(f'v_mfma_f32_16x16x32_bf16 {vr(VD+4*e,4)}, v[80:83], {vr(VT+8*e,4)}, v[88:91]')
    for e in range(8): a(f'v_mfma_f32_16x16x32_bf16 {vr(VD+4*e,4)}, v[84:87], {vr(VT+8*e+4,4)}, {vr(VD+4*e,4)}')
    a('s_mov_b32 s46, 163840\nv_mul_lo_u32 v6, v3, s46')
    a('v_lshrrev_b32 v7, 2, v2\nv_lshl_add_u32 v6, v7, 12, v6\nv_and_b32 v7, 3, v2\nv_lshl_add_u32 v6, v7, 4, v6')
    a(f's_mul_i32 s46, s{SW}, 655360\ns_lshl_b32 s47, s5, 14\ns_add_u32 s46, s46, s47\ns_lshl_b32 s47, s4, 7\ns_add_u32 s46, s46, s47')
    if T_OFF: a(f's_add_u32 s46, s46, {T_OFF}')
    a('s_add_u32 s47, s46, 81920')
    for r in range(4):
        for i in range(4): a(f'v_cvt_pk_bf16_f32 v{48+4*r+i}, v{VD+8*i+r}, v{VD+8*i+4+r}')
        a(f'buffer_store_dwordx4 {vr(48+4*r,4)}, v6, {S["ws"]}, s{46+(r>>1)} offen offset:{64*(r&1)}')
    a('s_endpgm')

    a.label('L_k1_other'); a.hist = []
    a('s_waitcnt lgkmcnt(0)')
    a('s_cmp_ge_u32 s2, 200')
    a('s_cbranch_scc1 L_k1_r3')
    a('s_sub_u32 s5, s2, 160\ns_cmp_ge_u32 s5, 20\ns_cselect_b32 s6, 20, 0\ns_cselect_b32 s7, 0, 640\ns_sub_u32 s5, s5, s6')
    a('s_lshl_b32 s4, s5, 5\ns_add_u32 s4, s4, s7')
    TR = {}
    def trig(nv):
        nv = (nv + 1) // 2 * 2
        TR['b'] = nv
        a(f's_lshl_b32 s44, s5, 5\ns_lshl_b32 s45, s{SW}, 3\ns_add_u32 s44, s44, s45')
        for ps in range(6):
            a(f'v_add_u32 v4, {64*ps}, v{VL}')
            a('v_mul_u32_u24 v5, s44, v4')
            a('v_lshrrev_b32 v6, 7, v5\nv_mul_u32_u24 v6, 52429, v6\nv_lshrrev_b32 v6, 18, v6\nv_mul_u32_u24 v6, 640, v6\nv_sub_u32 v5, v5, v6')
            a(f'v_cvt_f32_u32 v5, v5\nv_cvt_f32_u32 v4, v4\nv_mul_f32 v5, {hexf(1/640)}, v5\nv_mul_f32 v4, {hexf(1/640)}, v4')
            for jj in range(8):
                c = nv + 16*ps + jj
                a(f'v_fmamk_f32 v{c}, v4, {hexf(jj)}, v5')
                a(f'v_sin_f32 v{c+8}, v{c}\nv_cos_f32 v{c}, v{c}')
    gemv(32, S, VL, SW, 4, trig)
    nv = TR['b']
    a('s_cmp_eq_u32 s7, 640\ns_cselect_b32 s45, 1.0, 0')
    mod_store(32, S, VL, SW, 4, 45)
    a(f's_lshl_b32 s44, s{SW}, 3')
    for jj in range(8):
        a(f'v_readlane_b32 s{52+jj}, v10, s44')
        if jj < 7: a('s_add_u32 s44, s44, 1')
    a('s_cmp_eq_u32 s7, 640')
    a.settle()
    a('s_cbranch_scc0 L_k1_sa')
    a(f'v_lshrrev_b32 v4, 4, v{VL}\nv_mul_u32_u24 v4, 40960, v4\nv_and_b32 v5, 15, v{VL}\nv_lshl_add_u32 v4, v5, 4, v4')
    a(f's_lshl_b32 s44, s5, 10\ns_lshl_b32 s45, s{SW}, 8\ns_add_u32 s44, s44, s45\ns_add_u32 s44, s44, {FP_OFF}')
    for ps in range(6):
        if ps == 5: a('s_mov_b64 exec, 0xffff')
        for cs in range(2):
            c = nv + 16*ps + 8*cs
            for i in range(4): a(f'v_pk_mul_f32 v[{c+2*i}:{c+2*i+1}], v[{c+2*i}:{c+2*i+1}], s[{52+2*i}:{53+2*i}]')
            o = 12 + 4*((2*ps+cs) % 4)
            for i in range(4): a(f'v_cvt_pk_bf16_f32 v{o+i}, v{c+2*i}, v{c+2*i+1}')
            a(f'buffer_store_dwordx4 {vr(o,4)}, v4, {S["ws"]}, s44 offen')
            a(f's_add_u32 s44, s44, {20480 if cs == 0 else 163840-20480}')
    a('s_endpgm')
    a.label('L_k1_sa'); a.hist = []
    a(f's_mul_i32 s44, s{SW}, 3072\nv_lshlrev_b32 v4, 2, v{VL}\nv_add_u32 v5, s44, v4')
    for ps in range(6):
        for cs in range(2):
            c = nv + 16*ps + 8*cs
            a(f'v_mul_f32 v{c}, s52, v{c}')
            for jj in range(1, 8): a(f'v_fmac_f32 v{c}, s{52+jj}, v{c+jj}')
            a(f'ds_write_b32 v5, v{c} offset:{4096 + (cs*6+ps)*256}')
    a('s_waitcnt lgkmcnt(0)\ns_barrier')
    a(f's_mul_i32 s44, s{SW}, 768\nv_add_u32 v5, s44, v4')
    for i in range(3):
        for w in range(4): a(f'ds_read_b32 v{12+4*i+w}, v5 offset:{4096 + w*3072 + i*256}')
    a('s_waitcnt lgkmcnt(0)')
    a(f's_mul_i32 s45, s5, 3072\ns_add_u32 s45, s45, {GP_OFF}')
    for i in range(3):
        b = 12 + 4*i
        a(f'v_add_f32 v{b}, v{b}, v{b+1}\nv_add_f32 v{b+2}, v{b+2}, v{b+3}\nv_add_f32 v{b}, v{b}, v{b+2}')
        a(f'buffer_store_dword v{b}, v5, {S["ws"]}, s45 offen offset:{i*256}')
    a('s_endpgm')

    a.label('L_k1_r3'); a.hist = []
    a('s_cmp_ge_u32 s2, 220')
    a('s_cbranch_scc1 L_k1_r4')
    a('s_sub_u32 s5, s2, 200\ns_lshl_b32 s4, s5, 6\ns_add_u32 s4, s4, 1920')
    gemv(64, S, VL, SW, 4)
    a('s_cmp_ge_u32 s5, 10\ns_cselect_b32 s45, 1.0, 0')
    mod_store(64, S, VL, SW, 4, 45)
    a('s_endpgm')

    a.label('L_k1_r4'); a.hist = []
    a('s_cmp_ge_u32 s2, 247')
    a('s_cbranch_scc1 L_k1_end')
    a(f's_sub_u32 s5, s2, 220\ns_lshl_b32 s44, s5, 2\ns_add_u32 s44, s44, s{SW}\ns_mul_i32 s44, s44, 20480')
    rows_to_lds(S['wd'], VL, SW, 44, 1280, 4)
    a(f'v_lshrrev_b32 v4, 5, v{VL}\nv_lshlrev_b32 v4, 4, v4\nv_bfe_u32 v5, v{VL}, 2, 3\nv_add_u32 v4, v4, v5')
    a(f'v_mul_u32_u24 v4, {PITCH}, v4\nv_and_b32 v5, 3, v{VL}\nv_mul_u32_u24 v5, 40, v5\nv_add_u32 v4, v4, v5')
    a(f's_lshr_b32 s6, s{SW}, 1\ns_and_b32 s7, s{SW}, 1\ns_mul_i32 s44, s6, {32*PITCH}\ns_mul_i32 s45, s7, 640\ns_add_u32 s44, s44, s45\nv_add_u32 v4, s44, v4')
    a(f'v_lshlrev_b32 v5, 4, v{VL}')
    a(f's_lshl_b32 s44, s5, 1\ns_add_u32 s44, s44, s6\ns_mul_i32 s45, s7, 216\ns_add_u32 s44, s44, s45\ns_mul_i32 s44, s44, 5120\ns_add_u32 s44, s44, {WD_OFF}')
    a('s_waitcnt vmcnt(0)\ns_barrier')
    for j in range(4):
        for t in range(5):
            b = 8 + 4*(5*j+t)
            a(f'ds_read_b64_tr_b16 v[{b}:{b+1}], v4 offset:{160*j+8*t}')
            a(f'ds_read_b64_tr_b16 v[{b+2}:{b+3}], v4 offset:{160*j+8*t+8*PITCH}')
        a('s_waitcnt lgkmcnt(0)')
        for t in range(5):
            b = 8 + 4*(5*j+t)
            if t == 4: a('s_add_u32 s45, s44, 4096')
            a(f'buffer_store_dwordx4 {vr(b,4)}, v5, {S["ws"]}, s{45 if t == 4 else 44} offen offset:{(t%4)*1024}')
        a(f's_add_u32 s44, s44, {54*5120}')
    a.label('L_k1_end')
    a('s_endpgm')
    kernel_end(name)
    return f'; @launch kernel={name} grid=(247,1,1) block=(256,1,1) lds={64*PITCH+512}'

def tile_dma_voff(vd, vl, vt):
    a(f'v_lshrrev_b32 v{vt}, 4, v{vl}\nv_sub_u32 v{vt}, 0, v{vt}\nv_xor_b32 v{vt}, v{vt}, v{vl}\nv_and_b32 v{vt}, 3, v{vt}')
    a(f'v_lshrrev_b32 v{vd}, 2, v{vl}\nv_lshlrev_b32 v{vd}, 6, v{vd}\nv_lshl_add_u32 v{vd}, v{vt}, 4, v{vd}')
def tile_rd_addr(vd, v15, vq, vt):
    a(f'v_lshrrev_b32 v{vt}, 2, v{v15}\nv_sub_u32 v{vt}, 0, v{vt}\nv_xor_b32 v{vt}, v{vt}, v{vq}\nv_and_b32 v{vt}, 3, v{vt}')
    a(f'v_lshlrev_b32 v{vd}, 6, v{v15}\nv_lshl_add_u32 v{vd}, v{vt}, 4, v{vd}')

def k2():
    name = 'k2_kernel'
    kernel_begin(name)
    S = srd_load(['ws', 'wr', 'wi', 'wg', 'wu', 'c', 'wmod'], 8)
    VL = 1; SW = 3
    lane_wave(VL, SW)
    a('s_cmp_ge_u32 s2, 231')
    a('s_cbranch_scc1 L_k2_other')
    a('s_and_b32 s4, s2, 7\ns_lshr_b32 s5, s2, 3\ns_mul_i32 s6, s5, 37\ns_lshr_b32 s6, s6, 8')
    a('s_mul_i32 s7, s6, 7\ns_sub_u32 s5, s5, s7\ns_lshl_b32 s7, s4, 2\ns_add_u32 s7, s7, s6')
    a('s_cmp_ge_u32 s2, 224\ns_cselect_b32 s5, s4, s5\ns_cselect_b32 s4, 32, s7')
    a('s_and_b32 s6, s4, 31')
    tile_dma_voff(4, VL, 5)
    a(f's_mul_i32 s44, s6, 81920\ns_mul_i32 s40, s{SW}, 20480\ns_add_u32 s44, s44, s40')
    if T_OFF: a(f's_add_u32 s44, s44, {T_OFF}')
    a('s_waitcnt lgkmcnt(0)')
    for kk in range(5):
        if kk: a('s_add_u32 s40, s40, 4096\ns_add_u32 s44, s44, 4096')
        a('s_mov_b32 m0, s40')
        for t in range(4): a(f'buffer_load_dwordx4 v4, {S["ws"]}, s44 offen offset:{1024*t} lds')
    a(f'v_and_b32 v2, 15, v{VL}\nv_lshrrev_b32 v3, 4, v{VL}\nv_lshlrev_b32 v4, 4, v{VL}')
    a(f's_cmp_eq_u32 s{SW}, 3')
    a('s_cbranch_scc1 L_k2_prep')
    a(f's_mul_i32 s7, s5, 3\ns_add_u32 s7, s7, s{SW}')
    a(f's_mul_i32 s44, s7, 40960\ns_add_u32 s44, s44, {FP_OFF}\ns_add_u32 s45, s44, 20480')
    for kk in range(20):
        if kk and kk % 4 == 0: a('s_add_u32 s44, s44, 4096\ns_add_u32 s45, s45, 4096')
        a(f'buffer_load_dwordx4 {ar(8*kk,4)}, v4, {S["ws"]}, s44 offen offset:{1024*(kk%4)}')
        a(f'buffer_load_dwordx4 {ar(8*kk+4,4)}, v4, {S["ws"]}, s45 offen offset:{1024*(kk%4)}')
    VE2 = 64; VE3 = 96
    a('v_cvt_f32_u32 v5, v3')
    a('v_lshrrev_b32 v6, 1, v2\nv_and_b32 v7, 1, v2')
    a('v_lshl_add_u32 v8, v6, 6, s4\nv_cvt_f32_u32 v8, v8')
    a(f'v_mul_f32 v8, {hexf(1/2048)}, v8')
    a(f'v_cvt_f32_u32 v9, v7\nv_mul_f32 v9, {hexf(0.25)}, v9')
    a('v_add_f32 v10, v5, v5')
    for tp in range(4):
        if tp: a(f'v_add_f32 v8, {hexf(0.25)}, v8')
        a('v_fma_f32 v11, v8, v10, v9')
        for aa in range(2):
            for h in range(4):
                c = 16*aa + 8*(h >> 1) + (h & 1)
                x = 12 + 2*(h & 1)
                a(f'v_fmamk_f32 v{x}, v8, {hexf(c)}, v11')
                a(f'v_sin_f32 v{x+1}, v{x}\nv_cos_f32 v{x}, v{x}')
                a(f'v_cvt_pk_bf16_f32 v{VE2+8*tp+4*aa+h}, v{x}, v{x+1}')
    a('s_cmp_eq_u32 s6, 0\ns_cselect_b32 s46, 0, -1.0')
    a('v_mul_f32 v9, s46, v9')
    a('v_cvt_f32_u32 v8, v6')
    a(f'v_mul_f32 v8, {hexf(1/2048)}, v8')
    a('v_lshl_add_u32 v10, v3, 7, s4\nv_cvt_f32_u32 v10, v10')
    for t in range(4):
        if t: a(f'v_add_f32 v8, {hexf(8/2048)}, v8')
        a('v_fma_f32 v11, v8, v10, v9')
        for aa in range(2):
            for h in range(4):
                c = 16*aa + 8*(h >> 1) + (h & 1)
                x = 12 + 2*(h & 1)
                a(f'v_fmamk_f32 v{x}, v8, {hexf(64*c)}, v11')
                a(f'v_sin_f32 v{x+1}, v{x}\nv_cos_f32 v{x}, v{x}')
                a(f'v_cvt_pk_bf16_f32 v{VE3+8*t+4*aa+h}, v{x}, -v{x+1}')
    VW = 128
    for i in range(32): a(f'v_mov_b32 v{VW+i}, 0')
    a('s_lshl_b32 s46, s7, 4\nv_add_u32 v16, s46, v2\nv_lshlrev_b32 v16, 1, v16')
    a('v_lshl_add_u32 v17, v3, 7, s4')
    a('v_sub_u32 v18, 448, v17')
    a('v_mul_u32_u24 v17, 642, v17\nv_mul_u32_u24 v18, 642, v18\nv_add_u32 v17, v17, v16\nv_add_u32 v18, v18, v16')
    tile_rd_addr(19, 2, 3, 5)
    a('v_add_u32 v20, 40960, v19')
    a('s_waitcnt vmcnt(40)\ns_barrier')
    VAc = 32
    VF = 160
    def rdA(kk):
        for t in range(4):
            b = VF + 16*(kk % 3) + 4*t
            a(f'ds_read_b128 {vr(b,4)}, v{19 if kk < 10 else 20} offset:{(kk%10)*4096 + t*1024}')
    rdA(0); rdA(1)
    wl = []
    for u in range(8):
        o = (512*(u >> 1) + 64*(u & 1))*642
        wl.append((u, o))
    nw = 0
    for kk in range(20):
        if kk + 2 < 20: rdA(kk+2)
        if kk < 8:
            u, o = wl[kk]
            a(f's_mov_b32 s46, {o}\ns_mov_b32 s47, {1600*642-o}')
            a(f'buffer_load_short_d16_hi v{VW+4*u}, v17, {S["wr"]}, s46 offen')
            a(f'buffer_load_short_d16_hi v{VW+4*u+1}, v17, {S["wi"]}, s46 offen')
            a(f'buffer_load_short_d16_hi v{VW+4*u+2}, v18, {S["wr"]}, s47 offen')
            a(f'buffer_load_short_d16_hi v{VW+4*u+3}, v18, {S["wi"]}, s47 offen')
            nw += 4
        a(f's_waitcnt vmcnt({38-2*kk+nw}) lgkmcnt({min(8, 4*(19-kk))})')
        for t in range(4):
            for cs in range(2):
                d = vr(VAc+8*t+4*cs, 4)
                a(f'v_mfma_f32_16x16x32_bf16 {d}, {vr(VF+16*(kk%3)+4*t,4)}, {ar(8*kk+4*cs,4)}, {"0" if kk == 0 else d}')
    a('s_waitcnt vmcnt(0)')
    a('s_cmp_lg_u32 s6, 0')
    a.settle()
    a('s_cbranch_scc1 L_k2_nofix')
    a('s_cmp_eq_u32 s4, 0\ns_cselect_b32 s46, 0, 16')
    for i in range(32):
        a(f'v_and_b32 v{VE2+i}, 0xffff, v{VE2+i}\nv_lshlrev_b32 v{VE2+i}, s46, v{VE2+i}')
    a('s_cselect_b32 exec_lo, 0xffff, 0\ns_mov_b32 exec_hi, 0')
    a(f'v_mov_b32 v{VW+2}, v{VW}\nv_mov_b32 v{VW+3}, v{VW+1}')
    a('s_mov_b64 exec, -1')
    for i in range(32): a(f'v_mul_f32 v{VW+i}, 0.5, v{VW+i}')
    a.settle(); a.label('L_k2_nofix')
    for u in range(8):
        b = VW + 4*u
        a(f'v_add_f32 v5, v{b}, v{b+2}\nv_sub_f32 v{b+2}, v{b}, v{b+2}\nv_mov_b32 v{b}, v5')
        a(f'v_sub_f32 v6, v{b+1}, v{b+3}\nv_add_f32 v{b+3}, v{b+1}, v{b+3}\nv_mov_b32 v{b+1}, v6')
    VM = 160
    for cs in range(2):
        for t in range(4):
            for h in range(2):
                s = VAc + 8*t + 4*cs + 2*h
                a(f'v_cvt_pk_bf16_f32 v{VM+8*cs+2*t+h}, v{s}, v{s+1}')
    for aa in range(2):
        for tp in range(4):
            for cs in range(2):
                d = vr(VAc+8*tp+4*cs, 4)
                a(f'v_mfma_f32_16x16x32_bf16 {d}, {vr(VE2+8*tp+4*aa,4)}, {vr(VM+8*cs+4*aa,4)}, {"0" if aa == 0 else d}')
    a('s_cmp_lg_u32 s4, 0')
    a.settle()
    a('s_cbranch_scc1 L_k2_nosa')
    a(f'v_mul_u32_u24 v5, {5*3072}, v3\nv_lshl_add_u32 v5, v16, 1, v5\ns_mov_b32 s46, {GP_OFF}')
    for i in range(5):
        a(f'buffer_load_dword v{176+i}, v5, {S["ws"]}, s46 offen')
        a(f'buffer_load_dword v{184+i}, v5, {S["ws"]}, s46 offen offset:1536')
        a('s_add_u32 s46, s46, 3072')
    a('s_waitcnt vmcnt(0)')
    for b in (176, 184):
        a(f'v_add_f32 v{b}, v{b}, v{b+1}\nv_add_f32 v{b+2}, v{b+2}, v{b+3}\nv_add_f32 v{b}, v{b}, v{b+4}\nv_add_f32 v{b}, v{b}, v{b+2}')
        a(f'v_mov_b32 v{b+1}, v{b}\nv_permlane32_swap_b32 v{b}, v{b+1}\nv_add_f32 v{b}, v{b}, v{b+1}')
        a(f'v_mov_b32 v{b+1}, v{b}\nv_permlane16_swap_b32 v{b}, v{b+1}\nv_add_f32 v{b}, v{b}, v{b+1}')
    a('s_mov_b64 exec, 0xffff')
    a(f'v_fmamk_f32 v{VAc}, v176, {hexf(2048.0)}, v{VAc}\nv_fmamk_f32 v{VAc+4}, v184, {hexf(2048.0)}, v{VAc+4}')
    a('s_mov_b64 exec, -1')
    a.settle(); a.label('L_k2_nosa')
    for u in range(8):
        tp, r2 = u >> 1, u & 1
        Ar = VAc + 8*tp + 2*r2; Ai = Ar + 1; Br = Ar + 4; Bi = Ar + 5
        Pr = VW + 4*u; Pi = Pr + 1; Qr = Pr + 2; Qi = Pr + 3
        x = 8 + 4*(u & 1)
        a(f'v_mul_f32 v{x}, v{Ar}, v{Pr}\nv_mul_f32 v{x+1}, v{Ar}, v{Pi}\nv_mul_f32 v{x+2}, v{Br}, v{Pr}\nv_mul_f32 v{x+3}, v{Ar}, v{Qr}')
        a(f'v_fma_f32 v{x}, -v{Ai}, v{Pi}, v{x}\nv_fmac_f32 v{x+1}, v{Ai}, v{Pr}\nv_fma_f32 v{x+2}, -v{Ar}, v{Qi}, v{x+2}\nv_fma_f32 v{x+3}, -v{Ai}, v{Qi}, v{x+3}')
        a(f'v_fmac_f32 v{x}, v{Br}, v{Qi}\nv_fma_f32 v{x+1}, -v{Br}, v{Qr}, v{x+1}\nv_fma_f32 v{x+2}, -v{Ai}, v{Qr}, v{x+2}\nv_fmac_f32 v{x+3}, v{Br}, v{Pi}')
        a(f'v_fmac_f32 v{x}, v{Bi}, v{Qr}\nv_fmac_f32 v{x+1}, v{Bi}, v{Qi}\nv_fma_f32 v{x+2}, -v{Bi}, v{Pi}, v{x+2}\nv_fmac_f32 v{x+3}, v{Bi}, v{Pr}')
        a(f'v_cvt_pk_bf16_f32 v{VM+u}, v{x}, v{x+1}\nv_cvt_pk_bf16_f32 v{VM+8+u}, v{x+2}, v{x+3}')
    for aa in range(2):
        for t in range(4):
            for cs in range(2):
                d = vr(VAc+8*t+4*cs, 4)
                a(f'v_mfma_f32_16x16x32_bf16 {d}, {vr(VM+8*cs+4*aa,4)}, {vr(VE3+8*t+4*aa,4)}, {"0" if aa == 0 else d}')
    a('s_mov_b32 s46, 86016\nv_lshrrev_b32 v5, 1, v2\nv_mul_lo_u32 v5, v5, s46\nv_and_b32 v6, 1, v2\nv_lshl_add_u32 v5, v6, 6, v5\nv_lshl_add_u32 v5, v3, 4, v5')
    a(f's_lshl_b32 s46, s7, 12\ns_lshl_b32 s47, s6, 7\ns_add_u32 s46, s46, s47\ns_add_u32 s46, s46, {Z_OFF}')
    a('s_mov_b32 s47, -1\ns_cmp_eq_u32 s4, 0\ns_cselect_b32 s47, 0x55555555, s47\ns_cmp_eq_u32 s4, 32\ns_cselect_b32 s47, 0xaaaaaaaa, s47')
    for t in range(4):
        for i in range(4):
            s = VAc + 8*t + 2*i
            a(f'v_cvt_pk_bf16_f32 v{VM+4*t+i}, v{s}, v{s+1}')
    a('s_mov_b32 exec_lo, s47\ns_mov_b32 exec_hi, s47')
    for t in range(4):
        a(f'buffer_store_dwordx4 {vr(VM+4*t,4)}, v5, {S["ws"]}, s46 offen')
        if t < 3: a(f's_add_u32 s46, s46, {8*86016}')
    a('s_endpgm')

    a.label('L_k2_prep'); a.hist = []
    a('s_cmp_ge_u32 s2, 216')
    a('s_cbranch_scc1 L_k2_prep_skip')
    a('s_mul_i32 s46, s2, 2428\ns_lshr_b32 s46, s46, 16\ns_mul_i32 s47, s46, 27\ns_sub_u32 s47, s2, s47')
    PB = 81920
    a(f'v_lshrrev_b32 v5, 3, v{VL}\nv_mul_u32_u24 v6, 3456, v5\nv_and_b32 v5, 2, v5\nv_and_b32 v7, 7, v{VL}\nv_xor_b32 v7, v7, v5')
    a('v_lshl_add_u32 v8, v7, 4, v6\nv_xor_b32 v7, 4, v7\nv_lshl_add_u32 v9, v7, 4, v6')
    a(f's_mul_i32 s44, s46, {80*3456}\ns_lshl_b32 s45, s47, 7\ns_add_u32 s44, s44, s45\ns_mov_b32 s40, {PB}')
    for n in range(10):
        a('s_mov_b32 m0, s40')
        a(f'buffer_load_dwordx4 v8, {S["wg"]}, s44 offen lds')
        a('s_add_u32 s41, s40, 10240\ns_mov_b32 m0, s41')
        a(f'buffer_load_dwordx4 v9, {S["wu"]}, s44 offen lds')
        a(f's_add_u32 s40, s40, 1024\ns_add_u32 s44, s44, {8*3456}')
    a(f'v_and_b32 v5, 1, v{VL}\nv_mul_u32_u24 v5, 1280, v5\nv_sub_u32 v5, {4*1280}, v5')
    a(f'v_lshrrev_b32 v6, 5, v{VL}\nv_lshl_add_u32 v10, v6, 4, v5\nv_mul_u32_u24 v6, 80, v6\nv_add_u32 v11, v5, v6')
    a(f's_mul_i32 s44, s46, 160\ns_add_u32 s44, s44, {MODB_OFF}')
    for kp in range(4): a(f'buffer_load_dwordx4 {vr(16+4*kp,4)}, v10, {S["ws"]}, s44 offen offset:{40*kp}')
    a(f'buffer_load_dwordx2 v[32:33], v11, {S["ws"]}, s44 offen offset:32')
    a(f'buffer_load_dwordx2 v[34:35], v11, {S["ws"]}, s44 offen offset:72')
    a('s_waitcnt vmcnt(26)\ns_barrier')
    a(f'v_bfe_u32 v5, v{VL}, 4, 1\nv_mul_u32_u24 v12, 10240, v5\nv_bfe_u32 v6, v{VL}, 2, 2\nv_lshl_add_u32 v12, v6, 7, v12')
    a(f'v_and_b32 v6, 3, v{VL}\nv_lshl_add_u32 v12, v6, 3, v12\nv_add_u32 v12, {PB}, v12')
    a(f'v_bfe_u32 v13, v{VL}, 3, 2')
    a(f'v_lshrrev_b32 v6, 5, v{VL}')
    a('v_lshl_add_u32 v14, v6, 10, v12')
    a(f'v_mul_u32_u24 v6, {40*128}, v6\nv_add_u32 v15, v6, v12')
    for up in range(4):
        a(f'v_xor_b32 v5, {up}, v13\nv_lshl_add_u32 v{36+up}, v5, 5, v14\nv_lshl_add_u32 v{40+up}, v5, 5, v15')
    a(f's_lshl_b32 s44, s47, 2\ns_mul_i32 s44, s44, 40\ns_mul_i32 s45, s46, 5\ns_add_u32 s44, s44, s45\ns_lshl_b32 s44, s44, 10\ns_add_u32 s44, s44, {WGU_OFF}')
    a('s_waitcnt vmcnt(0)')
    for up in range(4):
        for kp in range(5):
            b = 48 + 4*(5*up+kp)
            if kp < 4:
                a(f'ds_read_b64_tr_b16 v[{b}:{b+1}], v{36+up} offset:{20*kp*128}')
                a(f'ds_read_b64_tr_b16 v[{b+2}:{b+3}], v{36+up} offset:{(20*kp+4)*128}')
            else:
                a(f'ds_read_b64_tr_b16 v[{b}:{b+1}], v{40+up} offset:{16*128}')
                a(f'ds_read_b64_tr_b16 v[{b+2}:{b+3}], v{40+up} offset:{36*128}')
        a('s_waitcnt lgkmcnt(0)')
        for kp in range(5):
            b = 48 + 4*(5*up+kp)
            if kp == 4: a('s_add_u32 s45, s44, 4096')
            a(f'buffer_store_dwordx4 {vr(b,4)}, v4, {S["ws"]}, s{45 if kp == 4 else 44} offen offset:{(kp%4)*1024}')
            d = vr(128+16*up, 16)
            a(f'v_mfma_f32_32x32x16_bf16 {d}, {vr(b,4)}, {vr(16+4*kp,4)}, {"0" if kp == 0 else d}')
        a('s_add_u32 s44, s44, 40960')
    a(f'v_and_b32 v5, 1, v{VL}\nv_lshlrev_b32 v5, 7, v5\nv_lshrrev_b32 v6, 5, v{VL}\nv_lshl_add_u32 v5, v6, 6, v5')
    a(f's_mul_i32 s44, s46, 108\ns_lshl_b32 s45, s47, 2\ns_add_u32 s44, s44, s45\ns_lshl_b32 s44, s44, 8\ns_add_u32 s44, s44, {V12_OFF}')
    a('s_mov_b32 exec_lo, 3\ns_mov_b32 exec_hi, 3')
    for up in range(4):
        for i in range(4):
            a(f'buffer_store_dwordx4 {vr(128+16*up+4*i,4)}, v5, {S["ws"]}, s44 offen offset:{256*up+16*i}')
    a('s_endpgm')
    a.label('L_k2_prep_skip'); a.hist = []
    a('s_waitcnt vmcnt(0)\ns_barrier')
    a('s_endpgm')

    a.label('L_k2_other'); a.hist = []
    a('s_waitcnt lgkmcnt(0)')
    a('s_cmp_ge_u32 s2, 251')
    a('s_cbranch_scc1 L_k2_end')
    a('s_sub_u32 s5, s2, 231\ns_cmp_ge_u32 s5, 10\ns_cselect_b32 s6, 1280, 0\ns_lshl_b32 s4, s5, 6\ns_add_u32 s4, s4, s6\ns_add_u32 s4, s4, 1280')
    gemv(64, S, VL, SW, 4)
    mod_store(64, S, VL, SW, 4, False)
    a.label('L_k2_end')
    a('s_endpgm')
    kernel_end(name)
    return f'; @launch kernel={name} grid=(251,1,1) block=(256,1,1) lds={81920+20480}'

def l3_ids():
    a('s_bfe_u32 s4, s2, 0x20001\ns_lshl_b32 s4, s4, 2\ns_lshr_b32 s5, s2, 6\ns_add_u32 s4, s4, s5')
    a('s_bfe_u32 s5, s2, 0x10005\ns_lshl_b32 s6, s4, 1\ns_add_u32 s5, s5, s6')
    a('s_and_b32 s7, s2, 1\ns_bfe_u32 s6, s2, 0x20003\ns_lshl_b32 s36, s7, 2\ns_add_u32 s6, s6, s36')
    a('s_bfe_u32 s36, s2, 0x30003')
    a('s_mul_i32 s7, s7, 54\ns_mul_i32 s37, s36, 7\ns_add_u32 s7, s7, s37\ns_cmp_eq_u32 s36, 7\ns_subb_u32 s7, s7, 0')
    a('s_cmp_lt_u32 s36, 6\ns_cselect_b32 s36, 7, 6')

def k3():
    name = 'k3_kernel'
    kernel_begin(name)
    S = srd_load(['ws', 'x'], 8)
    VL = 1; SW = 3
    lane_wave(VL, SW)
    a('s_cmp_ge_u32 s2, 256')
    a('s_cbranch_scc1 L_k3_end')
    l3_ids()
    tile_dma_voff(4, VL, 5)
    a(f's_mul_i32 s44, s5, 86016\ns_mul_i32 s40, s{SW}, 20480\ns_add_u32 s45, s44, {Z_OFF}\ns_add_u32 s44, s45, s40')
    a('s_waitcnt lgkmcnt(0)')
    for kk in range(5):
        if kk: a('s_add_u32 s40, s40, 4096\ns_add_u32 s44, s44, 4096')
        a('s_mov_b32 m0, s40')
        for t in range(4): a(f'buffer_load_dwordx4 v4, {S["ws"]}, s44 offen offset:{1024*t} lds')
    a(f's_lshl_b32 s40, s{SW}, 10\ns_add_u32 s40, s40, 81920\ns_add_u32 s44, s45, s40\ns_mov_b32 m0, s40')
    a(f'buffer_load_dwordx4 v4, {S["ws"]}, s44 offen lds')
    a(f'v_and_b32 v2, 15, v{VL}\nv_lshrrev_b32 v3, 4, v{VL}\nv_lshlrev_b32 v4, 4, v{VL}')
    a(f's_mul_i32 s44, s6, 5\ns_add_u32 s45, s44, 4\ns_add_u32 s44, s44, s{SW}\ns_mul_i32 s44, s44, 21504\ns_mul_i32 s45, s45, 21504')
    a(f's_add_u32 s44, s44, {G_OFF}\ns_add_u32 s45, s45, {G_OFF}')
    for c in range(4):
        a(f's_add_u32 s46, s{SW}, {c}\ns_and_b32 s46, s46, 3\ns_mul_i32 s{48+c}, s46, 5120')
        a(f's_add_u32 s46, s44, s{48+c}\ns_add_u32 s47, s46, 4096')
        if c == 0: a(f's_add_u32 s52, s45, s48\ns_add_u32 s53, s52, 4096')
        for i in range(5):
            a(f'buffer_load_dwordx4 {ar(4*(5*c+i),4)}, v4, {S["ws"]}, s{47 if i == 4 else 46} offen offset:{(i%4)*1024}')
            if c == 0: a(f'buffer_load_dwordx4 {ar(84+4*i,4)}, v4, {S["ws"]}, s{53 if i == 4 else 52} offen offset:{(i%4)*1024}')
    a('s_add_u32 s46, s44, 20480\ns_add_u32 s47, s45, 20480')
    a(f'buffer_load_dwordx4 a[80:83], v4, {S["ws"]}, s46 offen')
    a(f'buffer_load_dwordx4 a[104:107], v4, {S["ws"]}, s47 offen')
    a(f's_lshl_b32 s46, s{SW}, 4\nv_add_u32 v5, s46, v2\ns_mov_b32 s46, 40960\nv_mul_lo_u32 v6, v5, s46\nv_mul_u32_u24 v7, 40, v3\nv_add_u32 v6, v6, v7')
    a('s_mul_i32 s46, s5, 1280\ns_mul_i32 s47, s6, 160\ns_add_u32 s46, s46, s47')
    a(f'buffer_load_dwordx4 v[64:67], v6, {S["x"]}, s46 offen\nbuffer_load_dwordx4 v[68:71], v6, {S["x"]}, s46 offen offset:16\nbuffer_load_dwordx2 v[72:73], v6, {S["x"]}, s46 offen offset:32')
    a(f'v_lshlrev_b32 v7, 1, v7\ns_lshl_b32 s47, s47, 1\ns_add_u32 s46, s47, {MODF_OFF+2*2560}\ns_add_u32 s47, s47, {MODF_OFF+4*2560}')
    for i in range(5):
        a(f'buffer_load_dwordx4 {vr(76+4*i,4)}, v7, {S["ws"]}, s46 offen offset:{16*i}')
        a(f'buffer_load_dwordx4 {vr(96+4*i,4)}, v7, {S["ws"]}, s47 offen offset:{16*i}')
    NL = 27 + 13
    VE4 = 116
    a(f'v_cvt_f32_u32 v8, v5\nv_mul_f32 v8, {hexf(1/64)}, v8\nv_cvt_f32_u32 v9, v3\nv_add_f32 v9, v9, v9\nv_mul_f32 v9, v8, v9')
    for aa in range(2):
        for h in range(4):
            c = 16*aa + 8*(h >> 1) + (h & 1)
            x = 12 + 2*(h & 1)
            a(f'v_fmamk_f32 v{x}, v8, {hexf(c)}, v9')
            a(f'v_sin_f32 v{x+1}, v{x}\nv_cos_f32 v{x}, v{x}')
            a(f'v_cvt_pk_bf16_f32 v{VE4+4*aa+h}, v{x}, -v{x+1}')
    a('v_lshlrev_b32 v8, 31, v2\nv_or_b32 v8, 0x3f803f80, v8')
    a('s_mov_b64 exec, 0xffff')
    a(f'v_mov_b32 v{VE4}, v8')
    a('s_mov_b64 exec, -1')
    tile_rd_addr(16, 2, 3, 8)
    for c in range(4): a(f's_lshl_b32 s46, s{48+c}, 2\nv_add_u32 v{17+c}, s46, v16')
    a('v_add_u32 v21, 81920, v16')
    a(f's_waitcnt vmcnt({NL})\ns_barrier')
    VAc = 32
    VF = 128
    def rdA(kk):
        for t in range(4):
            b = VF + 16*(kk % 3) + 4*t
            a(f'ds_read_b128 {vr(b,4)}, v{17 + kk//5} offset:{(kk%5)*4096 + t*1024}')
    rdA(0); rdA(1)
    for kk in range(21):
        if kk + 2 < 21: rdA(kk+2)
        done = 2*(kk+1) if kk < 5 else 5 + kk + 1 if kk < 20 else 27
        a(f's_waitcnt vmcnt({NL-done}) lgkmcnt({min(8, 4*(20-kk))})')
        for t in range(4):
            d = vr(VAc+4*t, 4)
            a(f'v_mfma_f32_16x16x32_bf16 {d}, {vr(VF+16*(kk%3)+4*t,4)}, {ar(4*kk,4)}, {"0" if kk == 0 else d}')
        if kk == 20:
            a(f's_cmp_lg_u32 s{SW}, 0')
            a('s_cbranch_scc1 L_k3_no5')
        if kk < 5 or kk == 20:
            for t in range(4):
                d = vr(VAc+16+4*t, 4)
                a(f'v_mfma_f32_16x16x32_bf16 {d}, {vr(VF+16*(kk%3)+4*t,4)}, {ar(84+4*min(kk,5),4)}, {"0" if kk == 0 else d}')
    a.settle(); a.label('L_k3_no5'); a('s_nop 7')
    EX = 86016
    for i in range(16): a(f'v_cvt_pk_bf16_f32 v{VF+i}, v{VAc+2*i}, v{VAc+2*i+1}')
    a(f's_lshl_b32 s46, s{SW}, 11\ns_add_u32 s46, s46, {EX}\nv_add_u32 v8, s46, v4\nv_add_u32 v9, {EX}, v4')
    a(f'ds_write_b128 v8, {vr(VF,4)}\nds_write_b128 v8, {vr(VF+4,4)} offset:1024')
    a(f'ds_write_b128 v8, {vr(VF+8,4)} offset:8192\nds_write_b128 v8, {vr(VF+12,4)} offset:9216')
    a('s_waitcnt lgkmcnt(0)\ns_barrier')
    for i in range(16): a(f'ds_read_b128 {vr(VF+4*i,4)}, v9 offset:{1024*i}')
    order = [8, 9, 10, 11, 0, 2, 12, 4, 6, 13, 1, 3, 14, 5, 7, 15]
    a('s_waitcnt lgkmcnt(0)')
    for i in order:
        t = min(i >> 1, 4); d = vr(VAc+4*t, 4)
        first = (i == 8) if t == 4 else (i & 1) == 0
        a(f'v_mfma_f32_16x16x32_bf16 {d}, {vr(VF+4*i,4)}, {vr(VE4+4*(i&1),4)}, {"0" if first else d}')
    a('s_waitcnt vmcnt(0)')
    sc = 2.0 / (2048 * 640)
    for i in range(20): a(f'v_mul_f32 v{76+i}, {hexf(sc)}, v{76+i}')
    VX = 192
    for i in range(20):
        if i & 1: a(f'v_and_b32 v{VX+i}, 0xffff0000, v{64+i//2}')
        else: a(f'v_lshlrev_b32 v{VX+i}, 16, v{64+i//2}')
    for i in range(20): a(f'v_fmac_f32 v{VX+i}, v{76+i}, v{VAc+i}')
    a(f'v_mov_b32 v8, v{VX}\nv_mul_f32 v9, v{VX}, v{VX}')
    for i in range(1, 20): a(f'v_add_f32 v8, v8, v{VX+i}\nv_fmac_f32 v9, v{VX+i}, v{VX+i}')
    for i in range(10): a(f'v_cvt_pk_bf16_f32 v{64+i}, v{VX+2*i}, v{VX+2*i+1}')
    for i in range(20): a(f'v_mul_f32 v{VX+i}, v{VX+i}, v{96+i}')
    for i in range(10): a(f'v_cvt_pk_bf16_f32 v{76+i}, v{VX+2*i}, v{VX+2*i+1}')
    a(f's_lshr_b32 s46, s{SW}, 1\ns_lshl_b32 s47, s5, 1\ns_add_u32 s46, s46, s47')
    a(f's_and_b32 s47, s{SW}, 1\ns_lshl_b32 s47, s47, 4\nv_add_u32 v10, s47, v2')
    a('v_lshlrev_b32 v11, 4, v10\nv_lshl_add_u32 v12, v3, 10, v11')
    a('v_lshrrev_b32 v13, 1, v3\nv_lshl_add_u32 v13, v13, 9, v11\nv_and_b32 v14, 1, v3\nv_lshl_add_u32 v13, v14, 3, v13')
    a(f's_mul_i32 s48, s46, 40960\ns_mul_i32 s49, s6, 5120\ns_add_u32 s48, s48, s49\ns_add_u32 s48, s48, {XS_OFF}\ns_add_u32 s49, s48, 4096')
    a(f'buffer_store_dwordx4 v[76:79], v12, {S["ws"]}, s48 offen')
    a(f'buffer_store_dwordx4 v[80:83], v12, {S["ws"]}, s48 offen offset:512')
    a(f'buffer_store_dwordx2 v[84:85], v13, {S["ws"]}, s49 offen')
    a(f'v_mul_u32_u24 v14, 48, v0\ns_mul_i32 s50, s2, 12288\ns_add_u32 s50, s50, {X1_OFF}')
    a(f'buffer_store_dwordx4 v[64:67], v14, {S["ws"]}, s50 offen\nbuffer_store_dwordx4 v[68:71], v14, {S["ws"]}, s50 offen offset:16\nbuffer_store_dwordx2 v[72:73], v14, {S["ws"]}, s50 offen offset:32')
    for b in (8, 9):
        a(f'v_mov_b32 v15, v{b}\nv_permlane32_swap_b32 v{b}, v15\nv_add_f32 v{b}, v{b}, v15')
        a(f'v_mov_b32 v15, v{b}\nv_permlane16_swap_b32 v{b}, v15\nv_add_f32 v{b}, v{b}, v15')
    a(f'v_lshlrev_b32 v10, 6, v10\ns_lshl_b32 s48, s46, 11\ns_lshl_b32 s49, s6, 3\ns_add_u32 s48, s48, s49\ns_add_u32 s48, s48, {ST_OFF}')
    a('s_mov_b64 exec, 0xffff')
    a(f'buffer_store_dwordx2 v[8:9], v10, {S["ws"]}, s48 offen')
    a.label('L_k3_end')
    a('s_endpgm')
    kernel_end(name)
    return f'; @launch kernel={name} grid=(256,1,1) block=(256,1,1) lds={86016+16384}'

def k4():
    name = 'k4_kernel'
    kernel_begin(name)
    S = srd_load(['ws'], 8)
    VL = 1; SW = 3
    lane_wave(VL, SW)
    a('s_cmp_ge_u32 s2, 256')
    a('s_cbranch_scc1 L_k4_end')
    l3_ids()
    NS = 7; SB = 20480; VV = NS * SB
    a(f'v_lshlrev_b32 v4, 4, v{VL}')
    a(f's_mul_i32 s44, s7, 40960\ns_mul_i32 s45, s{SW}, 5120\ns_add_u32 s44, s44, s45\ns_add_u32 s44, s44, {WGU_OFF}')
    a('s_waitcnt lgkmcnt(0)')
    q = []
    def dma(st):
        a(f's_add_u32 s40, s45, {(st % NS)*SB}\ns_mov_b32 m0, s40')
        for i in range(4): a(f'buffer_load_dwordx4 v4, {S["ws"]}, s44 offen offset:{1024*i} lds')
        a('s_add_u32 s40, s40, 4096\ns_add_u32 s46, s44, 4096\ns_mov_b32 m0, s40')
        a(f'buffer_load_dwordx4 v4, {S["ws"]}, s46 offen lds')
        a(f's_add_u32 s44, s44, {SB}')
        q.extend([('w', st)] * 5)
    def wait_for(pred, extra=''):
        idx = max([i for i, t in enumerate(q) if pred(t)], default=-1)
        n = len(q) - 1 - idx
        del q[:idx+1]
        a(f's_waitcnt vmcnt({n}) {extra}'.strip())
    dma(0); dma(1)
    a('v_lshlrev_b32 v5, 4, v0')
    a(f's_lshl_b32 s47, s7, 8\ns_add_u32 s47, s47, {V12_OFF}')
    for j in range(8):
        a(f'buffer_load_dwordx4 {vr(64+4*j,4)}, v5, {S["ws"]}, s47 offen')
        if j < 7: a(f's_add_u32 s47, s47, {108*256}')
        q.append(('v', 0))
    a(f's_lshl_b32 s48, s4, 2\ns_add_u32 s48, s48, s{SW}')
    a(f'v_and_b32 v6, 31, v{VL}\nv_lshlrev_b32 v6, 6, v6\nv_lshrrev_b32 v7, 5, v{VL}\nv_lshl_add_u32 v6, v7, 5, v6')
    a(f's_lshl_b32 s47, s48, 11\ns_add_u32 s47, s47, {ST_OFF}')
    a(f'buffer_load_dwordx4 v[96:99], v6, {S["ws"]}, s47 offen\nbuffer_load_dwordx4 v[100:103], v6, {S["ws"]}, s47 offen offset:16')
    q.extend([('v', 0)] * 2)
    a(f's_mul_i32 s47, s48, 40960\ns_add_u32 s47, s47, {XS_OFF}')
    for kk in range(40):
        if kk and kk % 4 == 0: a('s_add_u32 s47, s47, 4096')
        a(f'buffer_load_dwordx4 {ar(4*kk,4)}, v4, {S["ws"]}, s47 offen offset:{1024*(kk%4)}')
        q.append(('x', kk))
    wait_for(lambda t: t[0] == 'v')
    for st in (1, 2, 4):
        for j in range(0, 8, 2*st):
            for i in range(4): a(f'v_add_f32 v{64+4*j+i}, v{64+4*j+i}, v{64+4*(j+st)+i}')
    a(f'v_add_u32 v5, {VV}, v5')
    a('v_cmp_gt_u32 vcc, 112, v0\ns_and_saveexec_b64 s[50:51], vcc')
    a('ds_write_b128 v5, v[64:67]')
    a('s_mov_b64 exec, -1')
    a('v_add_f32 v96, v96, v98\nv_add_f32 v97, v97, v99\nv_add_f32 v100, v100, v102\nv_add_f32 v101, v101, v103\nv_add_f32 v8, v96, v100\nv_add_f32 v9, v97, v101')
    for b in (8, 9): a(f'v_mov_b32 v10, v{b}\nv_permlane32_swap_b32 v{b}, v10\nv_add_f32 v{b}, v{b}, v10')
    a(f'v_mul_f32 v8, {hexf(-1/640)}, v8\nv_mul_f32 v9, {hexf(1/640)}, v9\nv_fma_f32 v9, -v8, v8, v9\nv_max_f32 v9, 0, v9')
    a(f'v_add_f32 v9, {hexf(1e-5)}, v9\nv_rsq_f32 v9, v9')
    dma(2); dma(3)
    a(f'v_lshlrev_b32 v7, 6, v7\nv_add_u32 v7, {VV}, v7')
    a('v_add_u32 v11, 61440, v4\nv_add_u32 v12, 122880, v4')
    a(f's_mul_i32 s47, s48, 108\ns_add_u32 s47, s47, s7\ns_lshl_b32 s47, s47, 10\ns_add_u32 s47, s47, {HH_OFF}')
    VF = 16; NF = 6
    VAc = 40
    VP = 72
    def rdW(n):
        st = n // 20; sl = st % NS
        base, off = ((4, sl*SB) if sl < 3 else (11, (sl-3)*SB) if sl < 6 else (12, 0))
        a(f'ds_read_b128 {vr(VF+4*(n%NF),4)}, v{base} offset:{off + (n%20)*1024}')
    def epi(u):
        ac = VAc + 16*(u & 1)
        ops = []
        for i in range(4): ops.append(('ds', f'ds_read_b128 {vr(VP+4*i,4)}, v7 offset:{u*256+16*i}'))
        for i in range(4): ops.append(('ds', f'ds_read_b128 {vr(VP+16+4*i,4)}, v7 offset:{u*256+128+16*i}'))
        for i in range(16): ops.append(('v', f'v_fmac_f32 v{ac+i}, v8, v{VP+i}'))
        for i in range(16): ops.append(('v', f'v_fma_f32 v{ac+i}, v9, v{ac+i}, v{VP+16+i}'))
        for i in range(8): ops.append(('v', f'v_mul_f32 v{ac+i}, v{ac+i}, v{ac+8+i}'))
        for i in range(4): ops.append(('v', f'v_cvt_pk_bf16_f32 v{104+i}, v{ac+2*i}, v{ac+2*i+1}'))
        ops.append(('st', f'buffer_store_dwordx4 v[104:107], v4, {S["ws"]}, s47 offen\ns_add_u32 s47, s47, 1024'))
        return ops
    PF = 4
    nst = 14
    wait_for(lambda t: t == ('w', 1), 'lgkmcnt(0)')
    a('s_barrier')
    for n in range(PF): rdW(n)
    lq = [('w', n) for n in range(PF)]
    pend = []
    nextdma = 4
    for st in range(nst):
        u = st // 2
        if st == 12:
            a('s_cmp_eq_u32 s36, 7')
            a.settle()
            a('s_cbranch_scc1 L_k4_u7')
            a('s_waitcnt lgkmcnt(0)')
            for k, t in epi(5):
                a(t)
                if k == 'ds': a('s_waitcnt lgkmcnt(0)')
            a('s_endpgm')
            a.label('L_k4_u7')
        if st > 0:
            if st + 1 < nst: wait_for(lambda t: t == ('w', st+1))
            a('s_barrier')
            while nextdma < nst and nextdma <= st - 1 + NS and len(q) <= 50:
                dma(nextdma); nextdma += 1
        if st % 2 == 0 and u > 0: pend = epi(u-1)
        for i in range(20):
            n = st*20 + i; kk = n % 40
            if n + PF < nst*20:
                rdW(n+PF); lq.append(('w', n+PF))
            if u == 0 and ('x', kk) in q: wait_for(lambda t: t == ('x', kk))
            idx = lq.index(('w', n)); cnt = len(lq) - 1 - idx; del lq[:idx+1]
            a(f's_waitcnt lgkmcnt({cnt})')
            d = vr(VAc+16*(u & 1), 16)
            a(f'v_mfma_f32_32x32x16_bf16 {d}, {vr(VF+4*(n%NF),4)}, {ar(4*kk,4)}, {"0" if kk == 0 else d}')
            budget = 2
            while pend and budget > 0 and (kk >= 1):
                k, t = pend[0]
                if k == 'v' and any(x[0] == 'e' for x in lq): break
                pend.pop(0); a(t); budget -= 1
                if k == 'ds': lq.append(('e', 0))
                if k == 'st': q.append(('s', 0))
        assert not (st % 2 == 1 and pend), 'epilogue did not drain'
    a('s_waitcnt lgkmcnt(0)')
    ops = epi(6)
    for k, t in ops[:8]: a(t)
    a('s_waitcnt lgkmcnt(0)')
    for k, t in ops[8:]: a(t)
    a.label('L_k4_end')
    a('s_endpgm')
    kernel_end(name)
    return f'; @launch kernel={name} grid=(256,1,1) block=(256,1,1) lds={VV+2048}'

def k5():
    name = 'k5_kernel'
    kernel_begin(name)
    S = srd_load(['ws', 'out'], 8)
    VL = 1; SW = 3
    lane_wave(VL, SW)
    a('s_cmp_ge_u32 s2, 256')
    a('s_cbranch_scc1 L_k5_end')
    l3_ids()
    a(f'v_and_b32 v2, 15, v{VL}\nv_lshrrev_b32 v3, 4, v{VL}\nv_lshlrev_b32 v4, 4, v{VL}')
    a('v_lshlrev_b32 v5, 9, v3\nv_lshl_add_u32 v5, v2, 4, v5')
    a(f's_mul_i32 s44, s{SW}, 14\ns_cmp_eq_u32 s{SW}, 3\ns_subb_u32 s44, s44, 0')
    a(f's_mul_i32 s45, s6, 54\ns_add_u32 s45, s45, s44\ns_mul_i32 s45, s45, 5120\ns_add_u32 s45, s45, {WD_OFF}')
    for tp in range(4):
        a(f's_add_u32 s46, s{SW}, {tp}\ns_and_b32 s46, s46, 3\ns_lshr_b32 s47, s46, 1\ns_lshl_b32 s52, s5, 1\ns_add_u32 s47, s47, s52\ns_mul_i32 s47, s47, {108*1024}')
        a(f's_and_b32 s46, s46, 1\ns_lshl_b32 s46, s46, 8\ns_add_u32 s47, s47, s46\ns_lshl_b32 s46, s44, 11\ns_add_u32 s47, s47, s46\ns_add_u32 s{48+tp}, s47, {HH_OFF}')
    a('s_waitcnt lgkmcnt(0)')
    NR = 6
    def ld(st):
        b = 36*(st % NR)
        for tp in range(4):
            a(f'buffer_load_dwordx4 {ar(b+4*tp,4)}, v5, {S["ws"]}, s{48+tp} offen offset:{2048*(st&1)}')
            if st & 1: a(f's_add_u32 s{48+tp}, s{48+tp}, 4096')
        for t in range(5):
            if t == 4: a('s_add_u32 s46, s45, 4096')
            a(f'buffer_load_dwordx4 {ar(b+16+4*t,4)}, v4, {S["ws"]}, s{46 if t == 4 else 45} offen offset:{(t%4)*1024}')
        a('s_add_u32 s45, s45, 5120')
    a(f'v_mul_u32_u24 v6, 48, v0\ns_mul_i32 s46, s2, 12288\ns_add_u32 s46, s46, {X1_OFF}')
    a(f'buffer_load_dwordx4 v[96:99], v6, {S["ws"]}, s46 offen\nbuffer_load_dwordx4 v[100:103], v6, {S["ws"]}, s46 offen offset:16\nbuffer_load_dwordx2 v[104:105], v6, {S["ws"]}, s46 offen offset:32')
    a(f'v_mul_u32_u24 v7, 80, v3\ns_mul_i32 s46, s6, 320\ns_add_u32 s46, s46, {MODF_OFF+5*2560}')
    for i in range(5): a(f'buffer_load_dwordx4 {vr(108+4*i,4)}, v7, {S["ws"]}, s46 offen offset:{16*i}')
    for st in range(NR): ld(st)
    VAc = 16
    for st in range(14):
        if st == 13:
            a(f's_cmp_ge_u32 s{SW}, 2')
            a('s_cbranch_scc1 L_k5_skip')
        rem = min(NR-1, 13-st)
        a(f's_waitcnt vmcnt({9*rem})')
        b = 36*(st % NR)
        for tp in range(4):
            for t in range(5):
                d = vr(VAc+20*tp+4*t, 4)
                a(f'v_mfma_f32_16x16x32_bf16 {d}, {ar(b+16+4*t,4)}, {ar(b+4*tp,4)}, {"0" if st == 0 else d}')
        if st + NR < 14: ld(st+NR)
    a.settle(); a.label('L_k5_skip'); a('s_nop 7')
    for tp in range(1, 4):
        a(f's_add_u32 s46, s{SW}, {tp}\ns_and_b32 s46, s46, 3\ns_mul_i32 s46, s46, 15360\nv_add_u32 v8, s46, v4')
        for t in range(5): a(f'ds_write_b128 v8, {vr(VAc+20*tp+4*t,4)} offset:{(tp-1)*5120+t*1024}')
    a(f's_mul_i32 s46, s{SW}, 15360\nv_add_u32 v8, s46, v4')
    a('s_waitcnt lgkmcnt(0)\ns_barrier')
    for i in range(15): a(f'ds_read_b128 {vr(VAc+20+4*i,4)}, v8 offset:{1024*i}')
    VX = 128
    for i in range(20):
        if i & 1: a(f'v_and_b32 v{VX+i}, 0xffff0000, v{96+i//2}')
        else: a(f'v_lshlrev_b32 v{VX+i}, 16, v{96+i//2}')
    a(f's_lshl_b32 s46, s{SW}, 4\nv_add_u32 v6, s46, v2\ns_mov_b32 s46, 40960\nv_mul_lo_u32 v6, v6, s46\nv_mul_u32_u24 v7, 40, v3\nv_add_u32 v6, v6, v7')
    a('s_mul_i32 s46, s5, 1280\ns_mul_i32 s47, s6, 160\ns_add_u32 s46, s46, s47')
    a('s_waitcnt lgkmcnt(0)')
    for i in range(20):
        a(f'v_add_f32 v{VAc+i}, v{VAc+i}, v{VAc+20+i}\nv_add_f32 v{VAc+40+i}, v{VAc+40+i}, v{VAc+60+i}')
    for i in range(20):
        a(f'v_add_f32 v{VAc+i}, v{VAc+i}, v{VAc+40+i}\nv_fmac_f32 v{VX+i}, v{VAc+i}, v{108+i}')
    for i in range(10): a(f'v_cvt_pk_bf16_f32 v{96+i}, v{VX+2*i}, v{VX+2*i+1}')
    a(f'buffer_store_dwordx4 v[96:99], v6, {S["out"]}, s46 offen\nbuffer_store_dwordx4 v[100:103], v6, {S["out"]}, s46 offen offset:16\nbuffer_store_dwordx2 v[104:105], v6, {S["out"]}, s46 offen offset:32')
    a.label('L_k5_end')
    a('s_endpgm')
    kernel_end(name)
    return f'; @launch kernel={name} grid=(256,1,1) block=(256,1,1) lds={61440}'

def main():
    a.raw('.amdgcn_target "amdgcn-amd-amdhsa--gfx950"\n.text')
    launches = [k1(), k2(), k3(), k4(), k5()]
    hdr = open('cdna_kernels/' + NAME + '.s.ref').read().split('; Override launch')[0]
    txt = hdr + '\n'.join(launches) + '\n' + a.text() + '.section .rodata,"a"\n' + ''.join('.p2align 6\n' + k + '\n' for k in KD)
    out = sys.argv[1] if len(sys.argv) > 1 else 'cdna_kernels/' + NAME + '.s'
    open(out, 'w').write(txt)
    print('wrote', out, len(txt), 'bytes', a.nins, 'instrs', file=sys.stderr)

if __name__ == '__main__':
    main()
```
